```python
import torch

def _softmax(x, axis=-1):
    return torch.softmax(x, dim=axis)
def _gelu(x):
    return torch.nn.functional.gelu(x, approximate="tanh")
def _silu(x):
    return torch.nn.functional.silu(x)
def _sigmoid(x):
    return torch.sigmoid(x)
def _layernorm(x, axis=-1, eps=1e-5):
    m = x.mean(dim=axis, keepdim=True)
    v = x.var(dim=axis, keepdim=True, unbiased=False)
    return (x - m) / torch.sqrt(v + eps)
def _scatter_add(tgt, idx, src, axis=0):
    return tgt.clone().index_add_(axis, idx, src)
def _segment_sum(src, seg, n):
    out = torch.zeros((n,) + src.shape[1:], dtype=src.dtype)
    return out.index_add_(0, seg, src)
def _pad(x, pw):
    flat = tuple(v for pair in reversed(pw) for v in pair)
    return torch.nn.functional.pad(x, flat)

kernel_name = 'standalone__gqa_block_cached__decode'

def setup_inputs():

    _w = (lambda a: (lambda t: t.to(torch.bfloat16) if t.is_floating_point() else t)(torch.as_tensor(a)))
    B, Sq, D = 1, 1, 512
    Hq, Hkv, Sk, Dh = 32, 8, 65536, 128
    assert Hq % Hkv == 0, (Hq, Hkv)
    return {
        "x": _w((lambda *s: torch.randn(*s, dtype=torch.bfloat16) * 0.8)(B, Sq, D)),
        "k_cache": _w((lambda *s: torch.randn(*s, dtype=torch.bfloat16) * 0.8)(B, Hkv, Sk, Dh)),
        "v_cache": _w((lambda *s: torch.randn(*s, dtype=torch.bfloat16) * 0.05)(B, Hkv, Sk, Dh)),
        "wq": _w((lambda *s: torch.randn(*s, dtype=torch.bfloat16) * 0.8)(D, Hq * Dh) * (D ** -0.5)),
        "wo": _w((lambda *s: torch.randn(*s, dtype=torch.bfloat16) * 0.05)(Hq * Dh, D) * ((Hq * Dh) ** -0.5)),
    }

def reference(x, k_cache, v_cache, wq, wo):
    B, Sq, D = x.shape
    Hq, Dh = 32, 128
    Hkv = k_cache.shape[1]
    rep = Hq // Hkv
    q = (lambda x, *d: x.permute(*d))((x @ wq).reshape(B, Sq, Hq, Dh), 0, 2, 1, 3)
    k = (lambda x, n, axis: torch.repeat_interleave(x, n, dim=axis))(k_cache, rep, axis=1)
    v = (lambda x, n, axis: torch.repeat_interleave(x, n, dim=axis))(v_cache, rep, axis=1)
    scores = torch.einsum("bhqd,bhkd->bhqk", q, k) * (Dh ** -0.5)
    p = _softmax(scores, axis=-1)
    o = torch.einsum("bhqk,bhkd->bhqd", p, v)
    return (lambda x, *d: x.permute(*d))(o, 0, 2, 1, 3).reshape(B, Sq, Hq * Dh) @ wo
```

```python
import sys
def lg(x):
    assert x & (x-1) == 0 and x > 0, x
    return x.bit_length()-1
def gen(nwg=256, waves=4, dc=8, flags="nt", ng=8, gsel="mod", skew=0, layout="linear", cl=4, vlag=0, kvrun=1, name="standalone__gqa_block_cached__decode_kernel"):
    total_waves = nwg * waves
    CH = 1024 * cl
    region = (128 << 20) // ng
    wpg = total_waves // ng
    rowb = wpg * CH
    nsteps = region // rowb
    nchunks = 2 * nsteps
    assert nchunks % dc == 0 and dc % 2 == 0, (nchunks, dc)
    nloads = dc * cl
    assert nloads <= 63
    o = []
    A = o.append
    A(f"; @launch grid=({nwg},1,1) block=({64*waves},1,1) lds=0")
    A('.amdgcn_target "amdgcn-amd-amdhsa--gfx950"')
    A(".text"); A(f".globl {name}"); A(".p2align 8"); A(f".type {name},@function"); A(f"{name}:")
    A(f"  s_cmp_ge_u32 s2, {nwg}"); A("  s_cbranch_scc1 L_end")
    A("  s_memrealtime s[32:33]")
    A("  s_load_dwordx4 s[4:7], s[0:1], 8")
    A("  s_load_dwordx2 s[20:21], s[0:1], 56")
    A("  v_lshrrev_b32 v1, 6, v0"); A("  v_and_b32 v0, 63, v0"); A("  s_nop 0")
    A("  v_readfirstlane_b32 s3, v1")
    A("  v_lshlrev_b32 v1, 4, v0")
    koffs = [j*1024 for j in range(4)]; voffs = list(koffs)
    if layout == "linear":
        A("  v_lshlrev_b32 v2, 4, v0")
    elif layout == "kperm":
        A("  v_and_b32 v3, 3, v0"); A("  v_lshlrev_b32 v2, 4, v3")
        A("  v_bfe_u32 v3, v0, 2, 2"); A("  v_lshl_add_u32 v2, v3, 8, v2")
        A("  v_lshrrev_b32 v3, 4, v0"); A("  v_lshl_add_u32 v2, v3, 6, v2")
    elif layout == "k16":
        A("  v_and_b32 v3, 15, v0"); A("  v_lshlrev_b32 v2, 8, v3"); A("  v_lshlrev_b32 v1, 4, v3")
        A("  v_lshrrev_b32 v3, 4, v0"); A("  v_lshl_add_u32 v2, v3, 4, v2"); A("  v_lshl_add_u32 v1, v3, 10, v1")
        koffs = [j*64 for j in range(4)]; voffs = [j*256 for j in range(4)]
    A("  s_waitcnt lgkmcnt(0)")
    A("  s_mov_b32 s8, s4"); A("  s_mov_b32 s9, s5"); A("  s_mov_b32 s10, 0x8000000"); A("  s_mov_b32 s11, 0x20000")
    A("  s_mov_b32 s12, s6"); A("  s_mov_b32 s13, s7"); A("  s_mov_b32 s14, 0x8000000"); A("  s_mov_b32 s15, 0x20000")
    A(f"  s_mul_i32 s17, s2, {waves}"); A("  s_add_u32 s17, s17, s3")
    wgpg = nwg // ng if ng <= nwg else 0
    if ng <= nwg:
        if gsel == "mod":
            A(f"  s_and_b32 s18, s2, {ng-1}"); A(f"  s_lshr_b32 s19, s2, {lg(ng)}")
        else:
            A(f"  s_lshr_b32 s18, s2, {lg(wgpg)}"); A(f"  s_and_b32 s19, s2, {wgpg-1}")
        A(f"  s_mul_i32 s19, s19, {waves}"); A("  s_add_u32 s19, s19, s3")
    else:
        assert ng == total_waves
        A("  s_mov_b32 s18, s17"); A("  s_mov_b32 s19, 0")
    A(f"  s_mul_i32 s28, s18, {region}"); A(f"  s_mul_i32 s19, s19, {CH}"); A("  s_add_u32 s28, s28, s19")
    A(f"  s_mul_i32 s29, s18, {skew*rowb % region}"); A(f"  s_and_b32 s29, s29, {region-1}")
    A(f"  s_add_u32 s30, s29, {(vlag*rowb) % region}"); A(f"  s_and_b32 s30, s30, {region-1}")
    import math
    U = dc * (2 * kvrun) // math.gcd(dc, 2 * kvrun)
    assert nchunks % U == 0
    def issue(slot, n=None):
        n = slot if n is None else n
        isk = (n // kvrun) % 2 == 0
        srd = "s[8:11]" if isk else "s[12:15]"
        pos = "s29" if isk else "s30"
        A(f"  s_add_u32 s16, s28, {pos}")
        if cl > 4: A(f"  s_add_u32 s22, s16, 4096")
        for j in range(cl):
            r = 4 + (slot * cl + j) * 4
            off = (koffs if isk else voffs)[j % 4]
            so = "s16" if j < 4 else "s22"
            A(f"  buffer_load_dwordx4 v[{r}:{r+3}], {'v2' if isk else 'v1'}, {srd}, {so} offen offset:{off} {flags}")
        A(f"  s_add_u32 {pos}, {pos}, {rowb}"); A(f"  s_and_b32 {pos}, {pos}, {region-1}")
    for s in range(dc): issue(s, s)
    iters = nchunks // U
    A(f"  s_mov_b32 s19, {iters}")
    A("  v_mov_b32 v3, 0")
    A("L_loop:")
    for n in range(U):
        s = n % dc
        A(f"  s_waitcnt vmcnt({nloads - cl})")
        r = 4 + (s * cl) * 4
        A(f"  v_xor_b32 v3, v3, v{r}")
        if n == U - dc:
            A("  s_cmp_eq_u32 s19, 1"); A("  s_cselect_b32 s10, 0, s10"); A("  s_cselect_b32 s14, 0, s14")
        issue(s, n + dc)
    A("  s_sub_u32 s19, s19, 1"); A("  s_cmp_lg_u32 s19, 0"); A("  s_cbranch_scc1 L_loop")
    A("  s_waitcnt vmcnt(0)")
    A("  v_xor_b32 v3, v3, v4")
    A("  s_mov_b32 s24, s20"); A("  s_mov_b32 s25, s21"); A("  s_mov_b32 s26, 0x20000000"); A("  s_mov_b32 s27, 0x20000")
    A("  s_memrealtime s[34:35]")
    A("  s_getreg_b32 s36, hwreg(HW_REG_XCC_ID)")
    A("  s_getreg_b32 s37, hwreg(HW_REG_HW_ID)")
    A("  s_waitcnt lgkmcnt(0)")
    A("  v_mov_b32 v4, s32"); A("  v_mov_b32 v5, s34"); A("  v_mov_b32 v6, s36"); A("  v_mov_b32 v7, s37")
    A("  v_readfirstlane_b32 s38, v3");
    A("  s_lshl_b32 s17, s17, 4"); A("  v_mov_b32 v2, 0")
    A("  s_mov_b64 exec, 1")
    A("  buffer_store_dwordx4 v[4:7], v2, s[24:27], s17 offen")
    A("L_end:")
    A("  s_endpgm")
    nv = 4 + nloads * 4
    A('.section .rodata,"a"'); A(".p2align 6"); A(f".amdhsa_kernel {name}")
    A(f"  .amdhsa_next_free_vgpr {nv}"); A("  .amdhsa_next_free_sgpr 40"); A(f"  .amdhsa_accum_offset {min(256,(nv+3)//4*4)}")
    A("  .amdhsa_group_segment_fixed_size 0"); A("  .amdhsa_kernarg_size 64"); A("  .amdhsa_user_sgpr_count 2")
    A("  .amdhsa_user_sgpr_kernarg_segment_ptr 1"); A("  .amdhsa_system_sgpr_workgroup_id_x 1"); A(".end_amdhsa_kernel")
    return "\n".join(o) + "\n"

if __name__ == "__main__":
    cfgs = eval(sys.argv[1])
    names = []
    for c in cfgs:
        n = "s2_" + "_".join(f"{k}{str(v).replace(' ','')}" for k, v in c.items()) + ".s"
        open(n, "w").write(gen(**c)); names.append(n)
    print(" ".join(names))
```
